```python
import torch

def _softmax(x, axis=-1):
    return torch.softmax(x, dim=axis)
def _gelu(x):
    return torch.nn.functional.gelu(x, approximate="tanh")
def _silu(x):
    return torch.nn.functional.silu(x)
def _sigmoid(x):
    return torch.sigmoid(x)
def _layernorm(x, axis=-1, eps=1e-5):
    m = x.mean(dim=axis, keepdim=True)
    v = x.var(dim=axis, keepdim=True, unbiased=False)
    return (x - m) / torch.sqrt(v + eps)
def _scatter_add(tgt, idx, src, axis=0):
    return tgt.clone().index_add_(axis, idx, src)
def _segment_sum(src, seg, n):
    out = torch.zeros((n,) + src.shape[1:], dtype=src.dtype)
    return out.index_add_(0, seg, src)
def _pad(x, pw):
    flat = tuple(v for pair in reversed(pw) for v in pair)
    return torch.nn.functional.pad(x, flat)

kernel_name = 'standalone__mha_block_cached__near_ridge'

def setup_inputs():

    _w = (lambda a: (lambda t: t.to(torch.bfloat16) if t.is_floating_point() else t)(torch.as_tensor(a)))
    B, Sq, D = 16, 160, 640
    H, Sk, Dh = 32, 512, 128
    return {
        "x": _w((lambda *s: torch.randn(*s, dtype=torch.bfloat16) * 0.8)(B, Sq, D)),
        "k_cache": _w((lambda *s: torch.randn(*s, dtype=torch.bfloat16) * 0.8)(B, H, Sk, Dh)),
        "v_cache": _w((lambda *s: torch.randn(*s, dtype=torch.bfloat16) * 0.05)(B, H, Sk, Dh)),
        "wq": _w((lambda *s: torch.randn(*s, dtype=torch.bfloat16) * 0.8)(D, H * Dh) * (D ** -0.5)),
        "wo": _w((lambda *s: torch.randn(*s, dtype=torch.bfloat16) * 0.05)(H * Dh, D) * ((H * Dh) ** -0.5)),
    }

def reference(x, k_cache, v_cache, wq, wo):
    B, Sq, D = x.shape
    H, Dh = 32, 128
    q = (lambda x, *d: x.permute(*d))((x @ wq).reshape(B, Sq, H, Dh), 0, 2, 1, 3)
    scores = torch.einsum("bhqd,bhkd->bhqk", q, k_cache) * (Dh ** -0.5)
    p = _softmax(scores, axis=-1)
    o = torch.einsum("bhqk,bhkd->bhqd", p, v_cache)
    return (lambda x, *d: x.permute(*d))(o, 0, 2, 1, 3).reshape(B, Sq, H * Dh) @ wo
```

```python
NAME = "standalone__mha_block_cached__near_ridge"

class K:
    def __init__(self):
        self.L = []
    def __call__(self, s):
        self.L.append("    " + s)
    def label(self, s):
        self.L.append(s + ":")
    def raw(self, s):
        self.L.append(s)
    def text(self):
        return "\n".join(self.L) + "\n"

def header(launch_lines):
    s = "".join(l + "\n" for l in launch_lines)
    s += '.amdgcn_target "amdgcn-amd-amdhsa--gfx950"\n.text\n'
    return s

def kstart(name):
    return f".globl {name}\n.p2align 8\n.type {name},@function\n{name}:\n"

def kdesc(name, vgpr, sgpr, accum):
    return f""".amdhsa_kernel {name}
  .amdhsa_next_free_vgpr {vgpr}
  .amdhsa_next_free_sgpr {sgpr}
  .amdhsa_accum_offset {accum}
  .amdhsa_group_segment_fixed_size 0
  .amdhsa_kernarg_size 64
  .amdhsa_user_sgpr_count 2
  .amdhsa_user_sgpr_kernarg_segment_ptr 1
  .amdhsa_system_sgpr_workgroup_id_x 1
.end_amdhsa_kernel
"""
RODATA = '.section .rodata,"a"\n.p2align 6\n'

def v(i, n=1):
    return f"v{i}" if n == 1 else f"v[{i}:{i+n-1}]"
def a(i, n=1):
    return f"a{i}" if n == 1 else f"a[{i}:{i+n-1}]"
def s(i, n=1):
    return f"s{i}" if n == 1 else f"s[{i}:{i+n-1}]"
```

```python
import sys, struct, math, os
OPT = set(os.environ.get('OPT', '').split(','))
from ag import *

XB_ = 16*160*640*2
KVB = 16*32*512*128*2
WB_ = 640*4096*2
OUTB = XB_
OFRAG = 32*128*5*1024
WSB = OFRAG + 8*128*5*1024

def f32bits(x): return struct.unpack("<I", struct.pack("<f", x))[0]
CSCALE = f32bits(math.log2(math.e) / math.sqrt(128.0))

STG = [32768, 98304, 124928]
WQB = STG
XOFF = 16384
WOST = 131072
FLAGS = 155648
LDS1 = 163840

ACC = 0
SREG = 160
NEGM = 200
LSUM = 220
AK = 225
AV = 229
DV = 237
TMP = 241
LANE = 255
WV = 249
AQ = 160
AX = 168
RV = 170
QF = 0
KF = [80, 144]
VF = [112, 176]
PA = 80
PB = [112, 132]

def acc(mt, qt): return ACC + (qt*8 + mt)*4
def mfma(k, d, A, B, C):
    k(f"v_mfma_f32_16x16x32_bf16 {d}, {A}, {B}, {C}")

def srd(k, dst, lo, hi, nbytes):
    k(f"s_mov_b32 s{dst}, s{lo}")
    k(f"s_and_b32 s{dst+1}, s{hi}, 0xffff")
    k(f"s_mov_b32 s{dst+2}, {nbytes}")
    k(f"s_mov_b32 s{dst+3}, 0x20000")

def interleave(k, mfmas, fillers):
    for s_ in fillers.get(-1, []): k(s_)
    for i, m in enumerate(mfmas):
        k(m)
        for s_ in fillers.get(i, []): k(s_)

def K1(dbg=None):
    k = K()
    nst = [0]
    def stamp():
        if dbg != "t": return
        k("s_memtime s[82:83]")
        k("s_waitcnt lgkmcnt(0)")
        k(f"s_mov_b32 s{84+nst[0]}, s82")
        nst[0] += 1
    def lstamp(lane_expr_sgpr, add=0):
        if dbg != "t": return
        k("s_memtime s[82:83]")
        k(f"s_add_u32 m0, {lane_expr_sgpr}, {add}")
        k("s_waitcnt lgkmcnt(0)")
        k("v_writelane_b32 v248, s82, m0")
    k("s_cmp_ge_u32 s2, 256")
    k("s_cbranch_scc1 K1_END")
    stamp()
    if dbg == "t":
        k("s_memrealtime s[98:99]")
    k("s_load_dwordx8 s[36:43], s[0:1], 0")
    k("s_load_dwordx2 s[44:45], s[0:1], 32")
    k("s_load_dwordx2 s[46:47], s[0:1], 56")
    k("v_lshrrev_b32 v254, 6, v0")
    k(f"v_and_b32 v{LANE}, 63, v0")
    k("v_readfirstlane_b32 s3, v254")
    k("s_and_b32 s48, s2, 7")
    k("s_lshr_b32 s49, s2, 3")
    k("s_and_b32 s50, s49, 7")
    k("s_lshr_b32 s51, s49, 3")
    k("s_and_b32 s6, s48, 1"); k("s_lshl_b32 s6, s6, 3"); k("s_add_u32 s6, s6, s50")
    k("s_lshr_b32 s7, s48, 1"); k("s_lshl_b32 s7, s7, 2"); k("s_add_u32 s7, s7, s51")
    k("s_lshr_b32 s4, s3, 1")
    k("s_and_b32 s5, s3, 1")
    k("s_mov_b32 s52, 0x98654210"); k("s_lshl_b32 s53, s50, 2"); k("s_lshr_b32 s52, s52, s53"); k("s_and_b32 s52, s52, 15")
    k("s_mov_b32 s54, 0x8530"); k("s_lshl_b32 s53, s51, 2"); k("s_lshr_b32 s54, s54, s53"); k("s_and_b32 s54, s54, 15")
    k("s_add_u32 s52, s52, s54")
    k("s_cmp_ge_u32 s52, 10"); k("s_cselect_b32 s53, 10, 0"); k("s_sub_u32 s52, s52, s53")
    L = LANE
    g, i16, r, c = TMP, TMP+1, TMP+2, TMP+3
    k(f"v_lshrrev_b32 v{g}, 4, v{L}")
    k(f"v_and_b32 v{i16}, 15, v{L}")
    k(f"v_bfe_u32 v{r}, v{L}, 2, 2")
    k(f"v_and_b32 v{c}, 3, v{L}")
    k("s_waitcnt lgkmcnt(0)")
    srd(k, 8, 36, 37, XB_)
    srd(k, 12, 42, 43, WB_)
    srd(k, 16, 38, 39, KVB)
    srd(k, 20, 40, 41, KVB)
    k("s_cmp_eq_u32 s5, 0")
    k("s_cselect_b32 s24, s38, s40"); k("s_cselect_b32 s25, s39, s41")
    k("s_and_b32 s25, s25, 0xffff"); k(f"s_mov_b32 s26, {KVB}"); k("s_mov_b32 s27, 0x20000")
    srd(k, 28, 46, 47, WSB)
    srd(k, 32, 44, 45, WB_)
    t1, t2, t3 = TMP+4, TMP+5, TMP+6
    for i in range(4, 8): k(f"v_mov_b32 v{RV+i}, 0")
    k("s_cmp_eq_u32 s3, 2"); k("s_cbranch_scc1 K1_PRO_X")
    k("s_cmp_eq_u32 s3, 3"); k("s_cbranch_scc1 K1_PRO_KV")
    k(f"v_lshrrev_b32 v{t1}, 5, v{L}")
    k(f"v_and_b32 v{t2}, 31, v{L}")
    k(f"v_xor_b32 v{t2}, v{t2}, v{t1}")
    k("s_lshl_b32 s53, s3, 17")
    k("s_lshl_b32 s54, s7, 9")
    k("s_add_u32 s53, s53, s54")
    k(f"v_lshlrev_b32 v{t3}, 13, v{t1}")
    k(f"v_add_u32 v{t3}, s53, v{t3}")
    for i in range(8):
        sw = ((i & 1) << 2) | (((i >> 2) & 1) << 3)
        k(f"v_xor_b32 v{RV+i}, {sw}, v{t2}")
        k(f"v_lshl_add_u32 v{RV+i}, v{RV+i}, 4, v{t3}")
        k(f"v_add_u32 v{RV+i}, {i*16384 - (i%4)*1024}, v{RV+i}")
    k("s_lshl_b32 s56, s52, 19")
    k("s_lshl_b32 s57, s3, 13")
    def wq_dma(k, buf_sgpr_or_const):
        out = []
        for half in range(2):
            if isinstance(buf_sgpr_or_const, int):
                out.append(f"s_add_u32 m0, s57, {buf_sgpr_or_const + half*4096}")
            else:
                out.append(f"s_add_u32 m0, {buf_sgpr_or_const}, {half*4096}")
            out.append("s_nop 0")
            for i in range(4*half, 4*half+4):
                out.append(f"buffer_load_dwordx4 v{RV+i}, s[12:15], s56 offen offset:{(i%4)*1024} lds")
        out.append("s_add_u32 s56, s56, 0x40000")
        out.append(f"s_cmp_ge_u32 s56, {WB_}\n    s_cselect_b32 s56, 0, s56")
        return out
    for st in range(3):
        for s_ in wq_dma(k, WQB[st]): k(s_)
    k("s_branch K1_PRO_DONE")
    k.label("K1_PRO_X")
    k(f"v_lshrrev_b32 v{t1}, 2, v{L}")
    k(f"v_mul_u32_u24 v{t3}, 1280, v{t1}")
    k(f"v_lshrrev_b32 v{t1}, 1, v{g}")
    k(f"v_xor_b32 v{t2}, v{g}, v{t1}")
    k(f"v_and_b32 v{t2}, 1, v{t2}")
    k(f"v_lshl_or_b32 v{t2}, v{t2}, 1, v{t1}")
    k(f"v_xor_b32 v{t2}, v{t2}, v{c}")
    k(f"v_lshl_add_u32 v{t3}, v{t2}, 4, v{t3}")
    for i in range(4):
        k(f"v_add_u32 v{RV+i}, {i*(20480-1024)}, v{t3}")
    k(f"s_mul_i32 s58, s6, {160*1280}")
    k("s_lshl_b32 s56, s52, 7")
    def x_dma(k, buf):
        out = []
        out.append("s_add_u32 s57, s58, s56")
        for grp in range(3):
            if isinstance(buf, int):
                out.append(f"s_mov_b32 m0, {buf + XOFF + grp*4096}")
            else:
                out.append(f"s_add_u32 m0, {buf}, {grp*4096}")
            if grp: out.append("s_add_u32 s57, s57, 81920")
            else: out.append("s_add_u32 s56, s56, 64")
            for i in range(4 if grp < 2 else 2):
                out.append(f"buffer_load_dwordx4 v{RV+i}, s[8:11], s57 offen offset:{i*1024} lds")
        out.append("s_cmp_ge_u32 s56, 1280\n    s_cselect_b32 s56, 0, s56")
        return out
    for st in range(3):
        for s_ in x_dma(k, STG[st]): k(s_)
    k("s_branch K1_PRO_DONE")
    k.label("K1_PRO_KV")
    k(f"v_lshlrev_b32 v{t3}, 8, v{g}")
    k(f"v_xor_b32 v{t2}, v{i16}, v{g}")
    k(f"v_lshlrev_b32 v{t1}, 1, v{g}")
    k(f"v_xor_b32 v{t1}, v{i16}, v{t1}")
    for p in range(4):
        k(f"v_xor_b32 v{RV+p}, {4*p}, v{t2}")
        k(f"v_lshl_add_u32 v{RV+p}, v{RV+p}, 4, v{t3}")
        k(f"v_xor_b32 v{RV+4+p}, {8*(p&1)}, v{t1}")
        k(f"v_lshl_add_u32 v{RV+4+p}, v{RV+4+p}, 4, v{t3}")
    k.label("K1_PRO_DONE")
    stamp()
    k("s_lshl_b32 s59, s6, 5"); k("s_lshl_b32 s53, s7, 1"); k("s_add_u32 s59, s59, s53"); k("s_lshl_b32 s59, s59, 17")
    k("s_lshl_b32 s53, s4, 17"); k("s_add_u32 s60, s59, s53")
    k("s_lshl_b32 s61, s4, 16"); k("s_lshl_b32 s53, s5, 13"); k("s_add_u32 s61, s61, s53")
    k(f"v_lshlrev_b32 v{t3}, 8, v{g}")
    k(f"v_lshlrev_b32 v{t1}, s5, v{g}")
    k(f"v_xor_b32 v{t1}, v{i16}, v{t1}")
    for p in range(4):
        k(f"s_cmp_eq_u32 s5, 0"); k(f"s_cselect_b32 s53, {4*p}, {8*(p&1)}")
        k(f"v_xor_b32 v{DV+p}, s53, v{t1}")
        k(f"v_lshl_add_u32 v{DV+p}, v{DV+p}, 4, v{t3}")
    k("s_lshl_b32 s53, s4, 16")
    k(f"v_lshlrev_b32 v{t3}, 8, v{i16}")
    k(f"v_add_u32 v{t3}, s53, v{t3}")
    k(f"v_xor_b32 v{t2}, v{g}, v{i16}")
    for s_ in range(4):
        k(f"v_xor_b32 v{AK+s_}, {4*s_}, v{t2}")
        k(f"v_lshl_add_u32 v{AK+s_}, v{AK+s_}, 4, v{t3}")
    k(f"v_lshrrev_b32 v{t1}, 2, v{L}")
    k(f"v_lshlrev_b32 v{t3}, 8, v{t1}")
    k("s_add_u32 s53, s53, 8192")
    k(f"v_add_u32 v{t3}, s53, v{t3}")
    k(f"v_and_b32 v{t2}, 1, v{L}")
    k(f"v_lshl_add_u32 v{t3}, v{t2}, 3, v{t3}")
    k(f"v_and_b32 v{t1}, 7, v{t1}")
    k(f"v_lshlrev_b32 v{t1}, 1, v{t1}")
    k(f"v_bfe_u32 v{t2}, v{L}, 1, 1")
    k(f"v_xor_b32 v{t2}, v{t2}, v{t1}")
    for D in range(8):
        k(f"v_xor_b32 v{AV+D}, {2*D}, v{t2}")
        k(f"v_lshl_add_u32 v{AV+D}, v{AV+D}, 4, v{t3}")
    k(f"v_lshl_add_u32 v{t3}, v{g}, 3, v{r}")
    k(f"v_lshlrev_b32 v{t3}, 9, v{t3}")
    k("s_lshl_b32 s53, s4, 8"); k(f"s_add_u32 s53, s53, {WQB[0]}")
    k(f"v_add_u32 v{t3}, s53, v{t3}")
    k(f"v_and_b32 v{t2}, 1, v{c}")
    k(f"v_lshl_add_u32 v{t3}, v{t2}, 3, v{t3}")
    k(f"v_and_b32 v{t1}, 1, v{r}")
    k(f"v_lshrrev_b32 v{t2}, 1, v{r}")
    k(f"v_lshl_or_b32 v{t1}, v{t2}, 2, v{t1}")
    k(f"v_and_b32 v{t2}, 1, v{g}")
    k(f"v_lshl_or_b32 v{t1}, v{t2}, 3, v{t1}")
    k(f"v_xor_b32 v{t1}, v{t1}, v{c}")
    for s_ in range(4):
        k(f"v_xor_b32 v{AQ+2*s_}, {4*s_}, v{t1}")
        k(f"v_lshl_add_u32 v{AQ+2*s_}, v{AQ+2*s_}, 4, v{t3}")
        k(f"v_xor_b32 v{AQ+2*s_+1}, 8, v{AQ+2*s_}")
    k(f"s_mul_i32 s53, s5, {80*64}"); k(f"s_add_u32 s53, s53, {STG[0]+XOFF}")
    k(f"v_lshlrev_b32 v{t3}, 6, v{i16}")
    k(f"v_add_u32 v{t3}, s53, v{t3}")
    k(f"v_lshrrev_b32 v{t1}, 1, v{r}")
    k(f"v_xor_b32 v{t2}, v{r}, v{t1}")
    k(f"v_and_b32 v{t2}, 1, v{t2}")
    k(f"v_lshl_or_b32 v{t2}, v{t2}, 1, v{t1}")
    k(f"v_xor_b32 v{t2}, v{t2}, v{g}")
    k(f"v_lshl_add_u32 v{AX}, v{t2}, 4, v{t3}")
    for i in range(160):
        k(f"v_mov_b32 v{ACC+i}, 0")
    k("s_mov_b32 s62, 0")
    k("s_mov_b32 s63, 0")
    k(f"s_mov_b32 s64, {WQB[1]-WQB[0]}"); k(f"s_mov_b32 s65, {WQB[2]-WQB[1]}"); k(f"s_mov_b32 s66, {(WQB[0]-WQB[2]) & 0xffffffff}")
    k("s_lshl_b32 s53, s3, 13")
    for j in range(3): k(f"s_add_u32 s{67+j}, s53, {WQB[j]}")
    k("s_cmp_eq_u32 s3, 2"); k("s_cbranch_scc1 K1_W0X")
    k("s_waitcnt vmcnt(16)")
    k.label("K1_W0X")
    k("s_waitcnt vmcnt(20)")
    k("s_barrier")
    stamp()
    def a_read(mt):
        return [f"ds_read_b64_tr_b16 a[{PA+4*mt}:{PA+4*mt+1}], v{AQ+mt}",
                f"ds_read_b64_tr_b16 a[{PA+4*mt+2}:{PA+4*mt+3}], v{AQ+mt} offset:2048"]
    def b_read(buf, qt):
        return f"ds_read_b128 a[{PB[buf]+4*qt}:{PB[buf]+4*qt+3}], v{AX} offset:{qt*1024}"
    for qt in range(5): k(b_read(0, qt))
    for mt in range(8):
        for s_ in a_read(mt): k(s_)
    k("s_cmp_eq_u32 s3, 2"); k("s_cbranch_scc1 K1_QL_X")
    k("s_cmp_eq_u32 s3, 3"); k("s_cbranch_scc1 K1_QL_KV")

    def qstep(k, par, wait, last=False, extra=None, phase=0):
        mf = []
        for mt in range(8):
            for qt in range(5):
                d = v(acc(mt, qt), 4)
                mf.append(f"v_mfma_f32_16x16x32_bf16 {d}, a[{PA+4*mt}:{PA+4*mt+3}], a[{PB[par]+4*qt}:{PB[par]+4*qt+3}], {d}")
        F = {}
        def add(gap, s_): F.setdefault(gap, []).append(s_)
        add(-1, "s_waitcnt lgkmcnt(4)")
        if not last:
            for mt in range(8): add(mt // 2, f"v_add_u32 v{AQ+mt}, s64, v{AQ+mt}")
        if wait: add(4, wait); add(4, "s_barrier")
        else: add(20, "s_waitcnt lgkmcnt(8)")
        if not last:
            add(5, f"v_add_u32 v{AX}, s64, v{AX}")
            for mt in range(8):
                rd = a_read(mt)
                add(5*mt + 4, rd[0])
                add(min(5*mt + 5, 39), rd[1])
            for qt in range(5):
                add(6 + 5*qt + 1, b_read(1 - par, qt))
            add(6, "s_mov_b32 s53, s64"); add(6, "s_mov_b32 s64, s65"); add(8, "s_mov_b32 s65, s66"); add(8, "s_mov_b32 s66, s53")
        if extra:
            nl = sum(1 for e in extra if e.startswith("buffer_load"))
            li = 0; pend = []
            for e in extra:
                if e.startswith("buffer_load"):
                    gp = 6 + phase + (li * 33) // nl
                    for n_, p_ in enumerate(pend): add(max(5, gp - len(pend) + n_), p_)
                    pend = []
                    add(gp, e); li += 1
                else:
                    pend.append(e)
            for p_ in pend: add(39, p_)
        interleave(k, mf, F)

    rot = ["s_mov_b32 s54, s67", "s_mov_b32 s67, s68", "s_mov_b32 s68, s69", "s_mov_b32 s69, s54"]
    kill = ["s_cmp_eq_u32 s63, 8\n    s_cselect_b32 s56, 0x40000000, s56"]
    for role, lab in (("wq", "K1_QL_WQ"), ("x", "K1_QL_X"), ("kv", "K1_QL_KV")):
        k.raw(".p2align 4")
        k.label(lab)
        for par in range(2):
            extra = []
            if role == "wq":
                extra = (kill if par else []) + [e for e in wq_dma(k, "s67") if e != "s_nop 0"] + rot
                wait = "s_waitcnt vmcnt(8) lgkmcnt(0)"
            elif role == "x":
                extra = (kill if par else []) + x_dma(k, "s67") + rot
                wait = "s_waitcnt vmcnt(10) lgkmcnt(0)"
            elif role == "kv":
                e = []
                if par == 0:
                    e += ["s_lshr_b32 s54, s63, 2\n    s_bfe_u32 s55, s63, 0x10001\n    s_and_b32 s56, s63, 1",
                          "s_lshl_b32 s56, s56, 12\n    s_lshl_b32 s57, s55, 17\n    s_add_u32 s57, s57, s59",
                          "s_add_u32 s57, s57, s56\n    s_lshl_b32 s58, s54, 13\n    s_add_u32 s57, s57, s58",
                          "s_lshl_b32 s58, s55, 16\n    s_add_u32 s58, s58, s56",
                          "s_lshl_b32 s54, s54, 14\n    s_add_u32 s58, s58, s54",
                          f"s_cmp_eq_u32 s63, 8\n    s_cselect_b32 s57, 0x40000000, s57\n    s_cselect_b32 s58, {151552}, s58"]
                e += [f"s_add_u32 m0, s58, {par*8192}"]
                for p in range(4):
                    e.append(f"buffer_load_dwordx4 v{RV+4*par+p}, s[{16+4*par}:{19+4*par}], s57 offen offset:{p*1024} nt lds")
                extra = e
                if "nokv" in OPT: extra = []
                wait = "s_waitcnt lgkmcnt(0)"
            if "nodma" in OPT: extra = []
            if "nobar" in OPT: wait = None
            qstep(k, par, wait, extra=extra, phase={"wq": 0, "x": 1, "kv": 6}[role])
        lstamp("s63")
        k("s_add_u32 s63, s63, 1")
        k("s_cmp_lt_u32 s63, 9")
        k(f"s_cbranch_scc1 {lab}")
        if role != "kv": k("s_branch K1_QTAIL")
    k.label("K1_QTAIL")
    stamp()
    qstep(k, 0, "s_waitcnt vmcnt(8) lgkmcnt(0)")
    def kv_dma(stage_slot, soff):
        out = [f"s_add_u32 m0, s61, {stage_slot*16384}", f"s_add_u32 s54, {soff}, 4096"]
        for p in range(4): out.append(f"buffer_load_dwordx4 v{DV+p}, s[24:27], {soff} offen offset:{p*1024} nt lds")
        out += [f"s_add_u32 m0, s61, {stage_slot*16384+4096}", f"s_add_u32 {soff}, {soff}, 8192"]
        for p in range(4): out.append(f"buffer_load_dwordx4 v{DV+p}, s[24:27], s54 offen offset:{p*1024} nt lds")
        return out
    pre = []
    for i in range(5):
        pre += [f"v_add_u32 v{t1}, {64*i}, v{L}",
                f"v_mul_u32_u24 v{t2}, 6554, v{t1}",
                f"v_lshrrev_b32 v{t2}, 16, v{t2}",
                f"v_mul_u32_u24 v{t3}, 1120, v{t2}",
                f"v_lshl_add_u32 v{WV+i}, v{t1}, 4, v{t3}"]
    pre += ["s_lshr_b32 s72, s2, 1", "s_and_b32 s73, s2, 1", "s_lshl_b32 s73, s73, 2", "s_add_u32 s73, s73, s3",
            "s_mul_i32 s55, s72, 40960", "s_mul_i32 s56, s73, 160", "s_add_u32 s55, s55, s56",
            f"s_mul_i32 s74, s3, 5120", f"s_add_u32 s74, s74, {WOST}"]
    for s_ in pre: k(s_)
    k("s_add_u32 s75, s60, 16384")
    late = []
    for i in range(5):
        late += [f"s_add_u32 m0, s74, {i*1024}", "s_nop 0", f"buffer_load_dwordx4 v{WV+i}, s[32:35], s55 offen lds"]
    late += kv_dma(2, "s75") + kv_dma(3, "s75")
    ex = late[:21]; late = late[21:]
    qstep(k, 1, "s_waitcnt vmcnt(0) lgkmcnt(0)", last=True, extra=ex)
    def pace():
        while late:
            e = late.pop(0); k(e)
            if e.startswith("buffer_load"): break
    stamp()
    k(f"s_mov_b32 s76, {CSCALE}"); k(f"s_mov_b32 s77, {CSCALE}")
    k("s_nop 7")
    for qt in range(5):
        for s_ in range(4):
            b0 = acc(2*s_, qt)
            for j in range(4): k(f"v_pk_mul_f32 {v(b0+2*j,2)}, {v(b0+2*j,2)}, s[76:77]")
            for j in range(4): k(f"v_cvt_pk_bf16_f32 v{b0+j}, v{b0+2*j}, v{b0+2*j+1}")
        pace()
    k("s_mov_b32 s78, 0xffff0000"); k("s_mov_b32 s79, 0xffff0000")
    k("s_mov_b64 exec, s[78:79]")
    for qt in range(5):
        for s_ in range(4):
            b0 = acc(2*s_, qt)
            k(f"v_swap_b32 v{b0}, v{b0+2}"); k(f"v_swap_b32 v{b0+1}, v{b0+3}")
    k("s_mov_b64 exec, -1")
    for qt in range(5):
        for s_ in range(4):
            b0 = acc(2*s_, qt)
            for j in range(4): k(f"v_accvgpr_write_b32 a{QF+qt*16+s_*4+j}, v{b0+j}")
        if qt % 2 == 0: pace()
    if dbg == "q":
        k("s_lshl_b32 s53, s6, 1"); k("s_add_u32 s53, s53, s5"); k("s_lshl_b32 s53, s53, 7")
        k("s_lshl_b32 s54, s7, 1"); k("s_add_u32 s54, s54, s4"); k("s_lshl_b32 s54, s54, 2")
        k("s_add_u32 s53, s53, s54"); k("s_mul_i32 s53, s53, 5120")
        k(f"v_lshlrev_b32 v{t3}, 4, v{L}")
        n = 0
        for s_ in range(4):
            for qt in range(5):
                k(f"buffer_store_dwordx4 a[{QF+qt*16+s_*4}:{QF+qt*16+s_*4+3}], v{t3}, s[28:31], s53 offen offset:{(n%4)*1024}")
                n += 1
                if n % 4 == 0: k("s_add_u32 s53, s53, 4096")
        k("s_waitcnt vmcnt(0)")
        k("s_endpgm")
    def k_read(buf, slot, f):
        kt, s_ = f // 4, f % 4
        return f"ds_read_b128 a[{KF[buf]+4*f}:{KF[buf]+4*f+3}], v{AK+s_} offset:{slot*16384+kt*4096}"
    def v_read(buf, slot, D, h):
        return f"ds_read_b64_tr_b16 a[{VF[buf]+4*D+2*h}:{VF[buf]+4*D+2*h+1}], v{AV+D} offset:{slot*16384+h*4096}"
    def qk(buf, q, cinit):
        out = []
        for kt in range(2):
            d = v(SREG + 8*q + 4*kt, 4)
            for s_ in range(4):
                f = kt*4 + s_
                C = d if s_ else cinit
                out.append(f"v_mfma_f32_16x16x32_bf16 {d}, a[{KF[buf]+4*f}:{KF[buf]+4*f+3}], a[{QF+q*16+s_*4}:{QF+q*16+s_*4+3}], {C}")
        return out
    def pv(buf, q):
        out = []
        for D in range(8):
            d = v(acc(D, q), 4)
            out.append(f"v_mfma_f32_16x16x32_bf16 {d}, a[{VF[buf]+4*D}:{VF[buf]+4*D+3}], {v(SREG+8*q,4)}, {d}")
        return out
    def xlane(k, op, reg, tmp):
        for sw in ("v_permlane16_swap_b32", "v_permlane32_swap_b32"):
            k(f"v_mov_b32 v{tmp}, v{reg}")
            k("s_nop 1")
            k(f"{sw} v{reg}, v{tmp}")
            k("s_nop 1")
            k(f"{op} v{reg}, v{reg}, v{tmp}")
    stamp()
    for f in range(8): k(k_read(0, 0, f))
    k("s_waitcnt lgkmcnt(0)")
    for q in range(5):
        for s_ in qk(0, q, "0"): k(s_)
        pace()
    assert not late
    k("s_nop 7")
    for q in range(5):
        S = SREG + 8*q
        m = NEGM + 4*q
        k(f"v_max3_f32 v{m}, v{S}, v{S+1}, v{S+2}")
        k(f"v_max3_f32 v{m}, v{m}, v{S+3}, v{S+4}")
        k(f"v_max3_f32 v{m}, v{m}, v{S+5}, v{S+6}")
        k(f"v_max_f32 v{m}, v{m}, v{S+7}")
    k.label("K1_SETM")
    for q in range(5):
        m = NEGM + 4*q
        xlane(k, "v_max_f32", m, t1)
        k(f"v_sub_f32 v{m}, 0, v{m}")
        for j in range(1, 4): k(f"v_mov_b32 v{m+j}, v{m}")
    for f in range(8): k(k_read(0, 0, f))
    for D in range(8):
        for h in range(2): k(v_read(0, 0, D, h))
    for i in range(160): k(f"v_mov_b32 v{ACC+i}, 0")
    for q in range(5): k(f"v_mov_b32 v{LSUM+q}, 0")
    k("s_waitcnt lgkmcnt(0)")
    for q in range(2):
        for s_ in qk(0, q, v(NEGM+4*q, 4)): k(s_)
    k("s_nop 1")
    def sm(q):
        S = SREG + 8*q
        F = {}
        for j in range(8):
            F.setdefault(2*j, []).append(f"v_exp_f32 v{S+j}, v{S+j}")
            F.setdefault(2*j+1, []).append(f"v_add_f32 v{LSUM+q}, v{LSUM+q}, v{S+j}")
            if j & 1:
                c_ = j // 2
                F[2*j+1].append(f"v_cvt_pk_bf16_f32 v{S+c_}, v{S+2*c_}, v{S+2*c_+1}")
        return F
    F = sm(0)
    for gidx in range(16):
        for s_ in F.get(gidx, []):
            k(s_)
            if "v_exp" in s_: k("s_nop 0")
    k("s_mov_b32 s63, 0")
    stamp()

    def att_iter(k, i4, dma=True, last=False, vm=16):
        cur, nxt = i4 % 2, 1 - i4 % 2
        nslot = (i4 + 1) % 4
        ex = [[] for _ in range(5)]
        pre = []
        if not last:
            pre = [f"s_waitcnt vmcnt({vm}) lgkmcnt(0)", "s_barrier"]
            kr = [k_read(nxt, nslot, f) for f in range(8)]
            vr = [v_read(nxt, nslot, D, h) for D in range(8) for h in range(2)]
            dm = kv_dma(i4, "s75") if dma else []
            if dm:
                ex[0] = kr[:4] + dm[0:3] + kr[4:]
                ex[1] = vr[:2] + dm[3:4] + vr[2:5] + dm[4:5] + vr[5:6]
                ex[2] = vr[6:8] + dm[5:6] + vr[8:11] + dm[6:8]
                ex[3] = dm[8:9] + vr[11:14] + dm[9:10] + vr[14:]
                ex[4] = dm[10:11] + dm[11:12]
            else:
                ex[0] = kr; ex[1] = vr[:6]; ex[2] = vr[6:11]; ex[3] = vr[11:]
        else:
            pre = ["s_waitcnt lgkmcnt(0)"]
        for w in range(5):
            q2, b2 = (w + 2) % 5, (cur if w + 2 < 5 else nxt)
            q1 = (w + 1) % 5
            do_qk = not (last and w + 2 >= 5)
            do_sm = not (last and w + 1 >= 5)
            mf = (qk(b2, q2, v(NEGM+4*q2, 4)) if do_qk else []) + pv(cur, w)
            F = sm(q1) if do_sm else {}
            if not do_qk and do_sm:
                F2 = {}
                for gi in sorted(F):
                    F2.setdefault(gi // 2, []).extend(F[gi])
                for gi in F2: F2[gi].insert(1, "s_nop 0")
                F = F2
            if w == 0: F[-1] = pre
            if w == 3 and not last: F[-1] = [f"s_waitcnt lgkmcnt(5)"]
            order = [1, 5, 9, 13, 3, 11, 7, 15, 0, 8, 4, 12]
            e = ex[w]
            gaps = sorted(order[:len(e)]) if len(e) != 2 else [1, 9]
            for gi, s_ in zip(gaps, e):
                F.setdefault(gi, []).append(s_)
            if last and w >= 3: F[-1] = ["s_nop 1"]
            interleave(k, mf, F)

    k.raw(".p2align 4")
    k.label("K1_ATT")
    for i4 in range(4):
        att_iter(k, i4)
        if dbg == "t":
            k("s_lshl_b32 s97, s63, 2")
            lstamp("s97", 16 + i4)
    k("s_add_u32 s63, s63, 1")
    k("s_cmp_lt_u32 s63, 3")
    k("s_cbranch_scc1 K1_ATT")
    stamp()
    att_iter(k, 0, dma=False, vm=16)
    att_iter(k, 1, dma=False, vm=8)
    att_iter(k, 2, dma=False, vm=0)
    att_iter(k, 3, dma=False, last=True)
    stamp()
    RI = SREG
    k(f"v_mov_b32 v{t2}, 0x4b800000")
    k("s_mov_b64 s[80:81], 0")
    for q in range(5):
        xlane(k, "v_add_f32", LSUM+q, t1)
        k(f"v_cmp_nlt_f32 vcc, v{LSUM+q}, v{t2}")
        k(f"v_rcp_f32 v{RI+2*q}, v{LSUM+q}")
        k("s_or_b64 s[80:81], s[80:81], vcc")
    k("s_lshl_b32 s53, s6, 1"); k("s_add_u32 s53, s53, s5"); k("s_lshl_b32 s53, s53, 7")
    k("s_lshl_b32 s54, s7, 1"); k("s_add_u32 s54, s54, s4"); k("s_lshl_b32 s54, s54, 2")
    k("s_add_u32 s53, s53, s54"); k("s_mul_i32 s53, s53, 5120")
    k(f"v_lshlrev_b32 v{t3}, 4, v{L}")
    n = 0
    for s_ in range(4):
        for qt in range(5):
            b0 = acc(2*s_, qt)
            for j in range(4): k(f"v_pk_mul_f32 {v(b0+2*j,2)}, {v(b0+2*j,2)}, {v(RI+2*qt,2)} op_sel_hi:[1,0]")
            for j in range(4): k(f"v_cvt_pk_bf16_f32 v{b0+j}, v{b0+2*j}, v{b0+2*j+1}")
            k(f"buffer_store_dwordx4 {v(b0,4)}, v{t3}, s[28:31], s53 offen offset:{(n%4)*1024}")
            n += 1
            if n % 4 == 0: k("s_add_u32 s53, s53, 4096")
    k(f"v_lshrrev_b32 v{t1}, 2, v{L}")
    k(f"v_mul_u32_u24 v{t1}, 160, v{t1}")
    k(f"v_and_b32 v{t2}, 3, v{L}")
    k(f"v_lshl_add_u32 v{t1}, v{t2}, 3, v{t1}")
    k(f"v_add_u32 v{t1}, s74, v{t1}")
    for j in range(5):
        for h in range(2):
            k(f"ds_read_b64_tr_b16 a[{KF[0]+4*j+2*h}:{KF[0]+4*j+2*h+1}], v{t1} offset:{h*2560+j*32}")
    k("s_lshl_b32 s53, s73, 7"); k("s_add_u32 s53, s53, s72"); k("s_mul_i32 s53, s53, 5120"); k(f"s_add_u32 s53, s53, {OFRAG}")
    k("s_add_u32 s54, s53, 4096")
    k("s_cmp_lg_u64 s[80:81], 0"); k("s_cselect_b32 s55, 1, 0")
    k(f"v_mov_b32 v{t2}, s55")
    k("s_lshl_b32 s56, s3, 2"); k(f"s_add_u32 s56, s56, {FLAGS}")
    k(f"v_mov_b32 v{t1}, s56")
    k(f"ds_write_b32 v{t1}, v{t2}")
    k("s_waitcnt lgkmcnt(0)")
    for j in range(4):
        k(f"buffer_store_dwordx4 a[{KF[0]+4*j}:{KF[0]+4*j+3}], v{t3}, s[28:31], s53 offen offset:{j*1024}")
    k(f"buffer_store_dwordx4 a[{KF[0]+16}:{KF[0]+19}], v{t3}, s[28:31], s54 offen")
    k("s_barrier")
    k(f"v_mov_b32 v{t1}, {FLAGS}")
    k(f"ds_read_b128 v[{SREG+16}:{SREG+19}], v{t1}")
    k("s_waitcnt lgkmcnt(0)")
    k(f"v_or_b32 v{t1}, v{SREG+16}, v{SREG+17}")
    k(f"v_or3_b32 v{t1}, v{t1}, v{SREG+18}, v{SREG+19}")
    k("s_nop 0")
    k(f"v_readfirstlane_b32 s55, v{t1}")
    k("s_nop 3")
    if dbg == "t":
        stamp()
        k("s_waitcnt vmcnt(0)")
        stamp()
        k("s_memrealtime s[100:101]")
        k("s_waitcnt lgkmcnt(0)")
        k("s_mov_b32 s30, 0x4000000")
        k("s_lshl_b32 s53, s2, 2"); k("s_add_u32 s53, s53, s3"); k("s_lshl_b32 s53, s53, 6"); k("s_add_u32 s53, s53, 0x2000000")
        for i in range(12): k(f"v_mov_b32 v{i}, s{84+i}")
        k("v_mov_b32 v14, s98"); k("v_mov_b32 v15, s100")
        k("v_mov_b32 v16, 0")
        k(f"v_lshlrev_b32 v17, 2, v{L}")
        k("s_lshl_b32 s54, s53, 2"); k("s_sub_u32 s54, s54, 0x5000000")
        k("buffer_store_dword v248, v17, s[28:31], s54 offen")
        k("s_mov_b64 exec, 1")
        for i in range(4): k(f"buffer_store_dwordx4 v[{4*i}:{4*i+3}], v16, s[28:31], s53 offen offset:{16*i}")
        k("s_waitcnt vmcnt(0)")
        k("s_endpgm")
    k("s_cmp_eq_u32 s55, 0"); k("s_cbranch_scc1 K1_END")
    k("s_cmp_lg_u32 s62, 0"); k("s_cbranch_scc1 K1_END")
    k("s_mov_b32 s62, 1")
    k("s_waitcnt vmcnt(0)")
    for q in range(5): k(f"v_mov_b32 v{NEGM+4*q}, 0xff800000")
    k("s_mov_b32 s75, s60")
    k("s_mov_b32 s63, 0")
    k.label("K1_FB")
    k("s_barrier")
    for s_ in kv_dma(0, "s75"): k(s_)
    k("s_waitcnt vmcnt(0)")
    k("s_barrier")
    for f in range(8): k(k_read(0, 0, f))
    k("s_waitcnt lgkmcnt(0)")
    for q in range(5):
        for s_ in qk(0, q, "0"): k(s_)
    k("s_nop 7")
    for q in range(5):
        S = SREG + 8*q; m = NEGM + 4*q
        for j in range(4): k(f"v_max3_f32 v{m}, v{m}, v{S+2*j}, v{S+2*j+1}")
    k("s_add_u32 s63, s63, 1")
    k("s_cmp_lt_u32 s63, 16")
    k("s_cbranch_scc1 K1_FB")
    k("s_barrier")
    k("s_mov_b32 s75, s60")
    for st in range(4):
        for s_ in kv_dma(st, "s75"): k(s_)
    k("s_waitcnt vmcnt(16)")
    k("s_barrier")
    k("s_branch K1_SETM")
    k.label("K1_END")
    k("s_endpgm")
    return k

_gid = [0]
def guard(lst, lab, cond):
    out = []
    for e in lst:
        if e.startswith("buffer_load"):
            _gid[0] += 1
            l = f"{lab}_{_gid[0]}"
            out.append(f"s_cbranch_vccnz {l}\n    {e}\n{l}:")
        else:
            out.append(e)
    return [cond + "\n    s_cselect_b64 vcc, -1, 0"] + out

def K2():
    k = K()
    DEPTH = int(os.environ.get('K2D', '4'))
    k("s_cmp_ge_u32 s2, 256")
    k("s_cbranch_scc1 K2_END")
    k("s_load_dwordx2 s[4:5], s[0:1], 56")
    k("s_load_dwordx2 s[6:7], s[0:1], 40")
    k("v_lshrrev_b32 v121, 6, v0")
    k("v_and_b32 v120, 63, v0")
    k("v_readfirstlane_b32 s3, v121")
    k("v_lshlrev_b32 v122, 4, v120")
    k("v_add_u32 v123, 4096, v122")
    k("s_and_b32 s20, s2, 7"); k("s_lshr_b32 s21, s2, 3")
    k("s_lshr_b32 s22, s21, 3"); k("s_lshl_b32 s20, s20, 2"); k("s_add_u32 s20, s20, s22")
    k("s_and_b32 s21, s21, 7")
    k("s_lshl_b32 s22, s3, 5")
    k("s_lshl_b32 s23, s20, 7"); k("s_add_u32 s23, s23, s22"); k("s_mul_i32 s23, s23, 5120")
    k("s_lshl_b32 s24, s21, 7"); k("s_add_u32 s24, s24, s22"); k("s_mul_i32 s24, s24, 5120"); k(f"s_add_u32 s24, s24, {OFRAG}")
    k("s_waitcnt lgkmcnt(0)")
    srd(k, 8, 4, 5, WSB)
    srd(k, 12, 6, 7, OUTB)
    def fr(st, j):
        return st*40 + 4*j
    WIN = 8
    k("s_and_b32 s31, s20, 3"); k("s_lshl_b32 s31, s31, 1"); k("s_add_u32 s31, s31, s21"); k(f"s_and_b32 s31, s31, {WIN-1}")
    if "norot" in OPT: k("s_mov_b32 s31, 0")
    k("s_mov_b32 s32, s23"); k("s_mov_b32 s33, s24")
    cnt = [0]
    def loads(st):
        out = ["s_mul_i32 s34, s31, 5120\n    s_add_u32 s23, s32, s34\n    s_add_u32 s24, s33, s34"]
        for j in range(5):
            vo, off = ("v122", j*1024) if j < 4 else ("v123", 0)
            out.append(f"buffer_load_dwordx4 a[{fr(st,j)}:{fr(st,j)+3}], {vo}, s[8:11], s24 offen offset:{off}")
            out.append(f"buffer_load_dwordx4 a[{fr(st,5+j)}:{fr(st,5+j)+3}], {vo}, s[8:11], s23 offen offset:{off}")
        tail = f"s_add_u32 s31, s31, 1\n    s_and_b32 s31, s31, {WIN-1}"
        cnt[0] += 1
        if cnt[0] % WIN == 0: tail += f"\n    s_add_u32 s32, s32, {5120*WIN}\n    s_add_u32 s33, s33, {5120*WIN}"
        out.append(tail)
        return out
    for st in range(DEPTH - 1):
        for s_ in loads(st): k(s_)
    for i in range(100): k(f"v_mov_b32 v{i}, 0")
    for ks in range(32):
        st = ks % DEPTH
        mf = []
        for i in range(5):
            for j in range(5):
                d = v(4*(i*5+j), 4)
                mf.append(f"v_mfma_f32_16x16x32_bf16 {d}, a[{fr(st,i)}:{fr(st,i)+3}], a[{fr(st,5+j)}:{fr(st,5+j)+3}], {d}")
        F = {}
        remaining_after = min(DEPTH - 2, 31 - ks)
        F[-1] = [f"s_waitcnt vmcnt({10*remaining_after})"]
        if ks + DEPTH - 1 < 32:
            ld = loads((ks + DEPTH - 1) % DEPTH)
            for idx, s_ in enumerate(ld): F.setdefault(1 + 2*idx, []).append(s_)
        interleave(k, mf, F)
    k("s_mul_i32 s25, s3, 25600")
    k("v_add_u32 v124, s25, v122")
    k("s_nop 7")
    for tI in range(25):
        k(f"ds_write_b128 v124, {v(4*tI,4)} offset:{tI*1024}")
    k("s_waitcnt lgkmcnt(0)")
    k("s_barrier")
    k("s_lshl_b32 s25, s3, 10")
    k("v_add_u32 v124, s25, v122")
    k("v_add_u32 v125, 51200, v124")
    k("v_and_b32 v126, 15, v120"); k("v_mul_u32_u24 v126, 1280, v126")
    k("v_lshrrev_b32 v127, 4, v120"); k("v_lshl_add_u32 v126, v127, 3, v126")
    k(f"s_mul_i32 s26, s20, {80*1280}"); k("s_mul_i32 s27, s21, 160"); k("s_add_u32 s26, s26, s27")
    for n in range(7):
        if n == 6:
            k("s_cmp_lg_u32 s3, 0"); k("s_cbranch_scc1 K2_END")
        b0 = 16 * n
        k(f"ds_read_b128 {v(b0,4)}, v124 offset:{n*4096}")
        k(f"ds_read_b128 {v(b0+4,4)}, v124 offset:{n*4096+25600}")
        k(f"ds_read_b128 {v(b0+8,4)}, v125 offset:{n*4096}")
        k(f"ds_read_b128 {v(b0+12,4)}, v125 offset:{n*4096+25600}")
        k(f"s_add_u32 s28, s3, {4*n}")
        k("s_mul_i32 s29, s28, 52"); k("s_lshr_b32 s29, s29, 8")
        k("s_mul_i32 s30, s29, 5"); k("s_sub_u32 s30, s28, s30")
        k("s_mul_i32 s30, s30, 20480"); k("s_lshl_b32 s29, s29, 5")
        k("s_add_u32 s30, s30, s29"); k("s_add_u32 s30, s30, s26")
        k("s_waitcnt lgkmcnt(0)")
        for j in range(4):
            k(f"v_add_f32 v{b0+j}, v{b0+j}, v{b0+4+j}")
            k(f"v_add_f32 v{b0+8+j}, v{b0+8+j}, v{b0+12+j}")
        for j in range(4): k(f"v_add_f32 v{b0+j}, v{b0+j}, v{b0+8+j}")
        k(f"v_cvt_pk_bf16_f32 v{b0}, v{b0}, v{b0+1}")
        k(f"v_cvt_pk_bf16_f32 v{b0+1}, v{b0+2}, v{b0+3}")
        k(f"buffer_store_dwordx2 {v(b0,2)}, v126, s[12:15], s30 offen")
    k.label("K2_END")
    k("s_endpgm")
    return k

def build(path, dbg=None):
    hdr = open("standalone__mha_block_cached__near_ridge.s.ref").read().split("\n")
    top = [l for l in hdr if l.startswith(";") and "@launch" not in l and "Override" not in l and "grid=ceil" not in l]
    txt = header(top + [f"; @launch kernel=mha_attn_kernel grid=(256,1,1) block=(256,1,1) lds={LDS1}",
                  f"; @launch kernel=mha_oproj_kernel grid=(256,1,1) block=(256,1,1) lds=102400"])
    txt += kstart("mha_attn_kernel") + K1(dbg).text()
    txt += kstart("mha_oproj_kernel") + K2().text()
    txt += RODATA + kdesc("mha_attn_kernel", 512, 102, 256) + ".p2align 6\n" + kdesc("mha_oproj_kernel", 512, 48, 256)
    open(path, "w").write(txt)

if __name__ == "__main__":
    build(sys.argv[1] if len(sys.argv) > 1 else "k.s", sys.argv[2] if len(sys.argv) > 2 else None)
```
